```python
import torch

def _softmax(x, axis=-1):
    return torch.softmax(x, dim=axis)
def _gelu(x):
    return torch.nn.functional.gelu(x, approximate="tanh")
def _silu(x):
    return torch.nn.functional.silu(x)
def _sigmoid(x):
    return torch.sigmoid(x)
def _layernorm(x, axis=-1, eps=1e-5):
    m = x.mean(dim=axis, keepdim=True)
    v = x.var(dim=axis, keepdim=True, unbiased=False)
    return (x - m) / torch.sqrt(v + eps)
def _scatter_add(tgt, idx, src, axis=0):
    return tgt.clone().index_add_(axis, idx, src)
def _segment_sum(src, seg, n):
    out = torch.zeros((n,) + src.shape[1:], dtype=src.dtype)
    return out.index_add_(0, seg, src)
def _pad(x, pw):
    flat = tuple(v for pair in reversed(pw) for v in pair)
    return torch.nn.functional.pad(x, flat)

kernel_name = 'standalone__grn__sampling'

def setup_inputs():

    _w = (lambda a: (lambda t: t.to(torch.bfloat16) if t.is_floating_point() else t)(torch.as_tensor(a)))
    B, S, D = 1024, 16, 640
    return {
        "x": _w((lambda *s: torch.randn(*s, dtype=torch.bfloat16) * 0.05)(B, S, D)),
        "g": _w((lambda *s: torch.randn(*s, dtype=torch.bfloat16) * 0.4)(D) * 0.1),
        "b": _w((lambda *s: torch.randn(*s, dtype=torch.bfloat16) * 0.1)(D) * 0.1),
    }

def reference(x, g, b):
    gx = torch.sqrt((x * x).sum(axis=-2, keepdims=True))
    nx = gx / (gx.mean(axis=-1, keepdims=True) + 1e-6)
    return g * (x * nx) + b + x
```

```python
import sys, argparse

HEADER = """; Kernarg layout for this problem (48 bytes, ptrs only, base s[0:1]):
; @launch grid=({grid},1,1) block=({block},1,1) lds={lds}
.amdgcn_target "amdgcn-amd-amdhsa--gfx950"
.text
.globl standalone__grn__sampling_kernel
.p2align 8
.type standalone__grn__sampling_kernel,@function
standalone__grn__sampling_kernel:
"""

FOOTER = """
.section .rodata,"a"
.p2align 6
.amdhsa_kernel standalone__grn__sampling_kernel
  .amdhsa_next_free_vgpr {vgpr}
  .amdhsa_next_free_sgpr {sgpr}
  .amdhsa_accum_offset {accum}
  .amdhsa_group_segment_fixed_size 0
  .amdhsa_kernarg_size 48
  .amdhsa_user_sgpr_count 2
  .amdhsa_user_sgpr_kernarg_segment_ptr 1
  .amdhsa_system_sgpr_workgroup_id_x 1
  .amdhsa_float_denorm_mode_32 3
.end_amdhsa_kernel
"""

def gen(ld_flags="", st_flags="", lds=64, instr=False, remap=False, dbg=False):
    L = []
    a = L.append
    def stamp(i):
        if instr or (dbg and i in (0,6)):
            a(f"  s_memrealtime s[{20+2*i}:{21+2*i}]")
    X = 8
    A = 40
    B = 48
    G = 56
    T = 58
    stamp(0)
    a("  s_load_dwordx4 s[4:7], s[0:1], 0")
    a("  s_load_dwordx4 s[8:11], s[0:1], 16")
    a("  s_cmp_ge_u32 s2, 1024")
    a("  s_cbranch_scc1 L_end")
    if instr:
        a("  s_load_dwordx2 s[16:17], s[0:1], 40")
    if dbg:
        a("  s_load_dwordx2 s[16:17], s[0:1], 32")
    if remap:
        a("  s_and_b32 s3, s2, 7")
        a("  s_lshl_b32 s3, s3, 7")
        a("  s_lshr_b32 s12, s2, 3")
        a("  s_add_u32 s3, s3, s12")
        a("  s_mul_i32 s3, s3, 20480")
    else:
        a("  s_mul_i32 s3, s2, 20480")
    a("  v_and_b32 v1, 15, v0")
    a("  v_lshrrev_b32 v2, 6, v0")
    a("  v_bfe_u32 v3, v0, 4, 2")
    a("  v_lshlrev_b32 v1, 4, v1")
    a("  v_lshl_add_u32 v1, v2, 8, v1")
    a("  v_mul_u32_u24 v4, 5120, v3")
    a("  v_add3_u32 v4, v4, v1, s3")
    a("  v_lshl_add_u32 v5, v3, 2, v1")
    a("  v_lshlrev_b32 v6, 2, v2")
    a("  v_mov_b32 v7, 0")
    a("  s_waitcnt lgkmcnt(0)")
    stamp(1)
    for k in range(4):
        r = X + 8*k + 4
        off = f" offset:{k*1280}" if k else ""
        a(f"  global_load_dwordx4 v[{r}:{r+3}], v4, s[4:5]{off}{ld_flags}")
    a(f"  global_load_dword v{G+1}, v5, s[6:7]")
    a(f"  global_load_dwordx4 v[{B+4}:{B+7}], v1, s[8:9]")
    a("  s_mov_b32 s12, 0xffff0000")
    def unpack(R):
        for j in range(4):
            a(f"  v_lshlrev_b32 v{R+2*j}, 16, v{R+4+j}")
            a(f"  v_and_b32 v{R+2*j+1}, s12, v{R+4+j}")
    for k in range(4):
        R = X + 8*k
        a(f"  s_waitcnt vmcnt({5-k})")
        if k == 0: stamp(2)
        if k == 3: stamp(3)
        unpack(R)
        for j in range(4):
            if k == 0:
                a(f"  v_pk_mul_f32 v[{A+2*j}:{A+2*j+1}], v[{R+2*j}:{R+2*j+1}], v[{R+2*j}:{R+2*j+1}]")
            else:
                a(f"  v_pk_fma_f32 v[{A+2*j}:{A+2*j+1}], v[{R+2*j}:{R+2*j+1}], v[{R+2*j}:{R+2*j+1}], v[{A+2*j}:{A+2*j+1}]")
    a("  s_nop 1")
    a(f"  v_permlane32_swap_b32 v{A+0}, v{A+4}")
    a(f"  v_permlane32_swap_b32 v{A+1}, v{A+5}")
    a(f"  v_permlane32_swap_b32 v{A+2}, v{A+6}")
    a(f"  v_permlane32_swap_b32 v{A+3}, v{A+7}")
    a(f"  v_pk_add_f32 v[{A}:{A+1}], v[{A}:{A+1}], v[{A+4}:{A+5}]")
    a(f"  v_pk_add_f32 v[{A+2}:{A+3}], v[{A+2}:{A+3}], v[{A+6}:{A+7}]")
    a("  s_nop 1")
    a(f"  v_permlane16_swap_b32 v{A+0}, v{A+2}")
    a(f"  v_permlane16_swap_b32 v{A+1}, v{A+3}")
    a(f"  v_pk_add_f32 v[{A}:{A+1}], v[{A}:{A+1}], v[{A+2}:{A+3}]")
    a(f"  v_sqrt_f32 v{A}, v{A}")
    a(f"  v_sqrt_f32 v{A+1}, v{A+1}")
    a("  s_waitcnt vmcnt(1)")
    a(f"  v_lshlrev_b32 v{G}, 16, v{G+1}")
    a(f"  v_add_f32 v{T}, v{A}, v{A+1}")
    a(f"  v_and_b32 v{G+1}, s12, v{G+1}")
    a(f"  v_pk_mul_f32 v[{A}:{A+1}], v[{A}:{A+1}], v[{G}:{G+1}]")
    a(f"  v_add_f32_dpp v{T}, v{T}, v{T} quad_perm:[1,0,3,2] row_mask:0xf bank_mask:0xf")
    a(f"  v_mov_b64 v[{A+2}:{A+3}], v[{A}:{A+1}]")
    a("  s_nop 0")
    a(f"  v_add_f32_dpp v{T}, v{T}, v{T} quad_perm:[2,3,0,1] row_mask:0xf bank_mask:0xf")
    a(f"  v_permlane16_swap_b32 v{A+0}, v{A+2}")
    a(f"  v_permlane16_swap_b32 v{A+1}, v{A+3}")
    a(f"  v_add_f32_dpp v{T}, v{T}, v{T} row_half_mirror row_mask:0xf bank_mask:0xf")
    a(f"  v_mov_b64 v[{A+4}:{A+5}], v[{A}:{A+1}]")
    a(f"  v_mov_b64 v[{A+6}:{A+7}], v[{A+2}:{A+3}]")
    a(f"  v_add_f32_dpp v{T}, v{T}, v{T} row_mirror row_mask:0xf bank_mask:0xf")
    a("  s_nop 0")
    a(f"  v_permlane32_swap_b32 v{A+0}, v{A+4}")
    a(f"  v_add_f32_dpp v{T}, v{T}, v{T} row_bcast:15 row_mask:0xa bank_mask:0xf")
    a(f"  v_permlane32_swap_b32 v{A+1}, v{A+5}")
    a(f"  v_permlane32_swap_b32 v{A+2}, v{A+6}")
    a(f"  v_add_f32_dpp v{T}, v{T}, v{T} row_bcast:31 row_mask:0xc bank_mask:0xf")
    a(f"  v_permlane32_swap_b32 v{A+3}, v{A+7}")
    a("  s_mov_b32 s14, 0")
    a("  s_mov_b32 s15, 0x80000000")
    a("  s_mov_b64 exec, s[14:15]")
    a(f"  ds_write_b32 v6, v{T}")
    a("  s_mov_b64 exec, -1")
    a("  s_waitcnt vmcnt(0)")
    unpack(B)
    a("  s_waitcnt lgkmcnt(0)")
    a("  s_barrier")
    stamp(4)
    a(f"  ds_read_b128 v[{T+2}:{T+5}], v7")
    a(f"  ds_read_b32 v{T}, v7 offset:16")
    a("  s_mov_b32 s13, 0x3acccccd")
    a("  v_mov_b32 v2, 0x358637bd")
    a("  s_waitcnt lgkmcnt(0)")
    a(f"  v_pk_add_f32 v[{T+2}:{T+3}], v[{T+2}:{T+3}], v[{T+4}:{T+5}]")
    a(f"  v_add_f32 v{T}, v{T}, v{T+2}")
    a(f"  v_add_f32 v{T}, v{T}, v{T+3}")
    a(f"  v_fma_f32 v{T}, v{T}, s13, v2")
    a(f"  v_rcp_f32 v{T}, v{T}")
    a("  s_nop 0")
    for j in range(4):
        a(f"  v_pk_fma_f32 v[{A+2*j}:{A+2*j+1}], v[{A+2*j}:{A+2*j+1}], v[{T}:{T+1}], 1.0 op_sel_hi:[1,0,0]")
    for k in range(4):
        R = X + 8*k
        for j in range(4):
            a(f"  v_pk_fma_f32 v[{R+2*j}:{R+2*j+1}], v[{R+2*j}:{R+2*j+1}], v[{A+2*j}:{A+2*j+1}], v[{B+2*j}:{B+2*j+1}]")
        for j in range(4):
            a(f"  v_cvt_pk_bf16_f32 v{R+j}, v{R+2*j}, v{R+2*j+1}")
        off = f" offset:{k*1280}" if k else ""
        a(f"  global_store_dwordx4 v4, v[{R}:{R+3}], s[10:11]{off}{st_flags}")
    if instr:
        stamp(5)
        a("  s_waitcnt vmcnt(0)")
        stamp(6)
        a("  s_getreg_b32 s34, hwreg(HW_REG_XCC_ID)")
        a("  s_getreg_b32 s35, hwreg(HW_REG_HW_ID)")
        a("  s_waitcnt lgkmcnt(0)")
        a("  v_lshrrev_b32 v2, 6, v0")
        a("  s_mul_i32 s3, s2, 5")
        a("  v_add_u32 v2, s3, v2")
        a("  v_lshlrev_b32 v2, 6, v2")
        for i in range(16):
            a(f"  v_mov_b32 v{8+i}, s{20+i}")
        a("  s_mov_b64 exec, 1")
        for i in range(4):
            a(f"  global_store_dwordx4 v2, v[{8+4*i}:{11+4*i}], s[16:17] offset:{16*i}")
    if dbg:
        a("  s_waitcnt vmcnt(0)")
        stamp(6)
        a("  s_getreg_b32 s34, hwreg(HW_REG_XCC_ID)")
        a("  s_and_b32 s34, s34, 7")
        a("  s_lshl_b32 s34, s34, 2")
        a("  s_waitcnt lgkmcnt(0)")
        a("  s_not_b32 s20, s20")
        a("  v_mov_b32 v2, s34")
        a("  v_mov_b32 v8, s20")
        a("  v_mov_b32 v9, s32")
        a("  v_cmp_eq_u32 vcc, 0, v0")
        a("  s_and_saveexec_b64 s[14:15], vcc")
        a("  s_cbranch_execz L_end")
        a("  global_atomic_umax v2, v8, s[16:17] sc1")
        a("  global_atomic_umax v2, v9, s[16:17] offset:32 sc1")
    a("L_end:")
    a("  s_endpgm")
    body = "\n".join(L)
    return HEADER.format(grid=1024, block=320, lds=lds) + body + FOOTER.format(vgpr=64, sgpr=40 if (instr or dbg) else 16, accum=64)

if __name__ == "__main__":
    p = argparse.ArgumentParser()
    p.add_argument("--ld", default="")
    p.add_argument("--st", default="")
    p.add_argument("--lds", type=int, default=64)
    p.add_argument("--instr", action="store_true")
    p.add_argument("--remap", action="store_true")
    p.add_argument("--dbg", action="store_true")
    p.add_argument("-o", default="standalone__grn__sampling.s")
    args = p.parse_args()
    ld = (" " + args.ld) if args.ld else ""
    st = (" " + args.st) if args.st else ""
    open(args.o, "w").write(gen(ld, st, args.lds, args.instr, args.remap, args.dbg))
```

```python
import sys, argparse
from gen_v1 import HEADER, FOOTER

def gen(o):
    L = []
    a = L.append
    instr = o.instr
    def stamp(i):
        if instr:
            a(f"  s_memrealtime s[{20+2*i}:{21+2*i}]")
    ld_flags = (" " + o.ld) if o.ld else ""
    st_flags = (" " + o.st) if o.st else ""
    X = 8
    A = 40
    B = 48
    G = 56
    T = 58
    stamp(0)
    if o.prio: a("  s_setprio 3")
    a("  s_load_dwordx4 s[4:7], s[0:1], 0")
    a("  s_load_dwordx4 s[8:11], s[0:1], 16")
    if instr:
        a("  s_load_dwordx2 s[16:17], s[0:1], 40")
    a("  s_cmp_ge_u32 s2, 1024")
    a("  s_cbranch_scc1 L_end")
    a("  s_mul_i32 s3, s2, 20480")
    a("  v_and_b32 v1, 15, v0")
    a("  v_lshrrev_b32 v2, 6, v0")
    a("  v_bfe_u32 v3, v0, 4, 2")
    a("  v_lshlrev_b32 v1, 4, v1")
    a("  v_lshl_add_u32 v1, v2, 8, v1")
    a("  v_mul_u32_u24 v4, 5120, v3")
    a("  v_add3_u32 v4, v4, v1, s3")
    a("  v_lshl_add_u32 v5, v3, 2, v1")
    a("  v_lshlrev_b32 v6, 2, v2")
    a("  v_mov_b32 v7, 0")
    a("  s_mov_b32 s12, 0xffff0000")
    a("  s_mov_b32 s14, 0")
    a("  s_mov_b32 s15, 0x80000000")
    a("  s_waitcnt lgkmcnt(0)")
    stamp(1)
    nextra = 0
    def gb_loads():
        a(f"  global_load_dword v{G+1}, v5, s[6:7]")
        a(f"  global_load_dwordx4 v[{B+4}:{B+7}], v1, s[8:9]")
    def touch():
        a("  s_mov_b64 exec, s[14:15]")
        a(f"  global_load_dword v3, v4, s[10:11]{' '+o.touchflags if o.touchflags else ''}")
        a("  s_mov_b64 exec, -1")
    if o.touch == 1: touch()
    if o.gbfirst: gb_loads()
    for k in range(4):
        r = X + 8*k + 4
        off = f" offset:{k*1280}" if k else ""
        a(f"  global_load_dwordx4 v[{r}:{r+3}], v4, s[4:5]{off}{ld_flags}")
    after = 0
    if not o.gbfirst:
        gb_loads(); after += 2
    if o.touch == 2:
        touch(); after += 1
    tail = 1 if o.touch == 2 else 0
    stamp(2)
    if o.prio: a("  s_setprio 0")
    def unpack(R):
        for j in range(4):
            a(f"  v_lshlrev_b32 v{R+2*j}, 16, v{R+4+j}")
            a(f"  v_and_b32 v{R+2*j+1}, s12, v{R+4+j}")
    for k in range(4):
        R = X + 8*k
        a(f"  s_waitcnt vmcnt({3-k+after})")
        if k == 3: stamp(3)
        unpack(R)
        for j in range(4):
            if k == 0:
                a(f"  v_pk_mul_f32 v[{A+2*j}:{A+2*j+1}], v[{R+2*j}:{R+2*j+1}], v[{R+2*j}:{R+2*j+1}]")
            else:
                a(f"  v_pk_fma_f32 v[{A+2*j}:{A+2*j+1}], v[{R+2*j}:{R+2*j+1}], v[{R+2*j}:{R+2*j+1}], v[{A+2*j}:{A+2*j+1}]")
    a("  s_nop 0")
    a(f"  v_permlane32_swap_b32 v{A+0}, v{A+4}")
    a(f"  v_permlane32_swap_b32 v{A+1}, v{A+5}")
    a(f"  v_permlane32_swap_b32 v{A+2}, v{A+6}")
    a(f"  v_permlane32_swap_b32 v{A+3}, v{A+7}")
    a(f"  v_pk_add_f32 v[{A}:{A+1}], v[{A}:{A+1}], v[{A+4}:{A+5}]")
    a(f"  v_pk_add_f32 v[{A+2}:{A+3}], v[{A+2}:{A+3}], v[{A+6}:{A+7}]")
    a("  s_nop 1")
    a(f"  v_permlane16_swap_b32 v{A+0}, v{A+2}")
    a(f"  v_permlane16_swap_b32 v{A+1}, v{A+3}")
    a(f"  v_pk_add_f32 v[{A}:{A+1}], v[{A}:{A+1}], v[{A+2}:{A+3}]")
    a(f"  v_sqrt_f32 v{A}, v{A}")
    a(f"  v_sqrt_f32 v{A+1}, v{A+1}")
    a("  s_nop 0")
    a(f"  v_add_f32 v{T}, v{A}, v{A+1}")
    a("  s_nop 1")
    a(f"  v_add_f32_dpp v{T}, v{T}, v{T} quad_perm:[1,0,3,2] row_mask:0xf bank_mask:0xf")
    a("  s_nop 1")
    a(f"  v_add_f32_dpp v{T}, v{T}, v{T} quad_perm:[2,3,0,1] row_mask:0xf bank_mask:0xf")
    a("  s_nop 1")
    a(f"  v_add_f32_dpp v{T}, v{T}, v{T} row_half_mirror row_mask:0xf bank_mask:0xf")
    a("  s_nop 1")
    a(f"  v_add_f32_dpp v{T}, v{T}, v{T} row_mirror row_mask:0xf bank_mask:0xf")
    a("  s_nop 1")
    a(f"  v_add_f32_dpp v{T}, v{T}, v{T} row_bcast:15 row_mask:0xa bank_mask:0xf")
    a("  s_nop 1")
    a(f"  v_add_f32_dpp v{T}, v{T}, v{T} row_bcast:31 row_mask:0xc bank_mask:0xf")
    a("  s_mov_b64 exec, s[14:15]")
    a(f"  ds_write_b32 v6, v{T}")
    a("  s_mov_b64 exec, -1")
    a("  s_mov_b32 s13, 0x3acccccd")
    a("  v_mov_b32 v2, 0x358637bd")
    a("  s_waitcnt lgkmcnt(0)")
    a("  s_barrier")
    a(f"  ds_read_b128 v[{T+2}:{T+5}], v7")
    a(f"  ds_read_b32 v{T}, v7 offset:16")
    stamp(4)
    a(f"  s_waitcnt vmcnt({tail+(0 if o.gbfirst else 1)})")
    a(f"  v_lshlrev_b32 v{G}, 16, v{G+1}")
    a(f"  v_and_b32 v{G+1}, s12, v{G+1}")
    a(f"  v_pk_mul_f32 v[{A}:{A+1}], v[{A}:{A+1}], v[{G}:{G+1}]")
    a(f"  v_pk_mul_f32 v[{A+2}:{A+3}], v[{A}:{A+1}], 1.0 op_sel_hi:[1,0]") if False else a(f"  v_mov_b64 v[{A+2}:{A+3}], v[{A}:{A+1}]")
    a(f"  s_waitcnt vmcnt({tail})")
    Bq = []
    for j in range(4):
        Bq.append(f"  v_lshlrev_b32 v{B+2*j}, 16, v{B+4+j}")
        Bq.append(f"  v_and_b32 v{B+2*j+1}, s12, v{B+4+j}")
    a(Bq[0]); a(Bq[1])
    a(f"  v_permlane16_swap_b32 v{A+0}, v{A+2}")
    a(f"  v_permlane16_swap_b32 v{A+1}, v{A+3}")
    a(f"  v_mov_b64 v[{A+4}:{A+5}], v[{A}:{A+1}]")
    a(f"  v_mov_b64 v[{A+6}:{A+7}], v[{A+2}:{A+3}]")
    a(Bq[2]); a(Bq[3])
    a(f"  v_permlane32_swap_b32 v{A+0}, v{A+4}")
    a(f"  v_permlane32_swap_b32 v{A+1}, v{A+5}")
    a(f"  v_permlane32_swap_b32 v{A+2}, v{A+6}")
    a(f"  v_permlane32_swap_b32 v{A+3}, v{A+7}")
    a(Bq[4]); a(Bq[5]); a(Bq[6]); a(Bq[7])
    a("  s_waitcnt lgkmcnt(0)")
    a(f"  v_pk_add_f32 v[{T+2}:{T+3}], v[{T+2}:{T+3}], v[{T+4}:{T+5}]")
    a(f"  v_add_f32 v{T}, v{T}, v{T+2}")
    a(f"  v_add_f32 v{T}, v{T}, v{T+3}")
    a(f"  v_fma_f32 v{T}, v{T}, s13, v2")
    a(f"  v_rcp_f32 v{T}, v{T}")
    a("  s_nop 0")
    for j in range(4):
        a(f"  v_pk_fma_f32 v[{A+2*j}:{A+2*j+1}], v[{A+2*j}:{A+2*j+1}], v[{T}:{T+1}], 1.0 op_sel_hi:[1,0,0]")
    for k in range(4):
        R = X + 8*k
        for j in range(4):
            a(f"  v_pk_fma_f32 v[{R+2*j}:{R+2*j+1}], v[{R+2*j}:{R+2*j+1}], v[{A+2*j}:{A+2*j+1}], v[{B+2*j}:{B+2*j+1}]")
        for j in range(4):
            a(f"  v_cvt_pk_bf16_f32 v{R+j}, v{R+2*j}, v{R+2*j+1}")
        off = f" offset:{k*1280}" if k else ""
        a(f"  global_store_dwordx4 v4, v[{R}:{R+3}], s[10:11]{off}{st_flags}")
    if instr:
        stamp(5)
        a("  s_waitcnt vmcnt(0)")
        stamp(6)
        a("  s_getreg_b32 s34, hwreg(HW_REG_XCC_ID)")
        a("  s_getreg_b32 s35, hwreg(HW_REG_HW_ID)")
        a("  s_waitcnt lgkmcnt(0)")
        a("  v_lshrrev_b32 v2, 6, v0")
        a("  s_mul_i32 s3, s2, 5")
        a("  v_add_u32 v2, s3, v2")
        a("  v_lshlrev_b32 v2, 6, v2")
        for i in range(16):
            a(f"  v_mov_b32 v{8+i}, s{20+i}")
        a("  s_mov_b64 exec, 1")
        for i in range(4):
            a(f"  global_store_dwordx4 v2, v[{8+4*i}:{11+4*i}], s[16:17] offset:{16*i}")
    a("L_end:")
    a("  s_endpgm")
    body = "\n".join(L)
    return HEADER.format(grid=1024, block=320, lds=o.lds) + body + FOOTER.format(vgpr=64, sgpr=40 if instr else 16, accum=64)

if __name__ == "__main__":
    p = argparse.ArgumentParser()
    p.add_argument("--ld", default="")
    p.add_argument("--st", default="")
    p.add_argument("--lds", type=int, default=64)
    p.add_argument("--instr", action="store_true")
    p.add_argument("--prio", action="store_true")
    p.add_argument("--gbfirst", action="store_true")
    p.add_argument("--touch", type=int, default=0)
    p.add_argument("--touchflags", default="")
    p.add_argument("-o", default="standalone__grn__sampling.s")
    args = p.parse_args()
    open(args.o, "w").write(gen(args))
```

```python
import sys, argparse
from gen_v1 import HEADER, FOOTER

def gen(o):
    L = []
    a = L.append
    instr = o.instr
    def stamp(i):
        if instr:
            a(f"  s_memrealtime s[{20+2*i}:{21+2*i}]")
    ld_flags = (" " + o.ld) if o.ld else ""
    st_flags = (" " + o.st) if o.st else ""
    X = 8
    A = 40
    B = 48
    G = 56
    T = 58
    stamp(0)
    if o.prio: a("  s_setprio 3")
    a("  s_load_dwordx4 s[4:7], s[0:1], 0")
    a("  s_load_dwordx4 s[8:11], s[0:1], 16")
    if instr:
        a("  s_load_dwordx2 s[16:17], s[0:1], 40")
    a("  s_cmp_ge_u32 s2, 1024")
    a("  s_cbranch_scc1 L_end")
    a("  s_mul_i32 s3, s2, 20480")
    a("  v_and_b32 v1, 15, v0")
    a("  v_lshrrev_b32 v2, 6, v0")
    a("  v_bfe_u32 v3, v0, 4, 2")
    a("  v_lshlrev_b32 v1, 4, v1")
    a("  v_lshl_add_u32 v1, v2, 8, v1")
    a("  v_mul_u32_u24 v4, 5120, v3")
    a("  v_add3_u32 v4, v4, v1, s3")
    a("  v_lshl_add_u32 v5, v3, 2, v1")
    a("  v_lshlrev_b32 v6, 2, v2")
    a("  v_mov_b32 v7, 0")
    a("  s_mov_b32 s12, 0xffff0000")
    a("  s_mov_b32 s14, 0")
    a("  s_mov_b32 s15, 0x80000000")
    a("  s_waitcnt lgkmcnt(0)")
    stamp(1)
    nextra = 0
    def gb_loads():
        a(f"  global_load_dword v{G+1}, v5, s[6:7]")
        a(f"  global_load_dwordx4 v[{B+4}:{B+7}], v1, s[8:9]")
    def touch():
        a("  s_mov_b64 exec, s[14:15]")
        a(f"  global_load_dword v3, v4, s[10:11]{' '+o.touchflags if o.touchflags else ''}")
        a("  s_mov_b64 exec, -1")
    if o.touch == 1: touch()
    if o.gbfirst: gb_loads()
    for k in range(4):
        r = X + 8*k + 4
        off = f" offset:{k*1280}" if k else ""
        a(f"  global_load_dwordx4 v[{r}:{r+3}], v4, s[4:5]{off}{ld_flags}")
    after = 0
    if not o.gbfirst:
        gb_loads(); after += 2
    if o.touch == 2:
        touch(); after += 1
    tail = 1 if o.touch == 2 else 0
    stamp(2)
    if o.prio == 1: a("  s_setprio 0")
    if o.prio == 3: a("  s_setprio 1")
    def unpack(R):
        for j in range(4):
            a(f"  v_lshlrev_b32 v{R+2*j}, 16, v{R+4+j}")
            a(f"  v_and_b32 v{R+2*j+1}, s12, v{R+4+j}")
    for k in range(4):
        R = X + 8*k
        a(f"  s_waitcnt vmcnt({3-k+after})")
        if k == 3: stamp(3)
        unpack(R)
        for j in range(4):
            if k == 0:
                a(f"  v_pk_mul_f32 v[{A+2*j}:{A+2*j+1}], v[{R+2*j}:{R+2*j+1}], v[{R+2*j}:{R+2*j+1}]")
            else:
                a(f"  v_pk_fma_f32 v[{A+2*j}:{A+2*j+1}], v[{R+2*j}:{R+2*j+1}], v[{R+2*j}:{R+2*j+1}], v[{A+2*j}:{A+2*j+1}]")
    a("  s_nop 0")
    a(f"  v_permlane32_swap_b32 v{A+0}, v{A+4}")
    a(f"  v_permlane32_swap_b32 v{A+1}, v{A+5}")
    a(f"  v_permlane32_swap_b32 v{A+2}, v{A+6}")
    a(f"  v_permlane32_swap_b32 v{A+3}, v{A+7}")
    a(f"  v_pk_add_f32 v[{A}:{A+1}], v[{A}:{A+1}], v[{A+4}:{A+5}]")
    a(f"  v_pk_add_f32 v[{A+2}:{A+3}], v[{A+2}:{A+3}], v[{A+6}:{A+7}]")
    a("  s_nop 1")
    a(f"  v_permlane16_swap_b32 v{A+0}, v{A+2}")
    a(f"  v_permlane16_swap_b32 v{A+1}, v{A+3}")
    a(f"  v_pk_add_f32 v[{A}:{A+1}], v[{A}:{A+1}], v[{A+2}:{A+3}]")
    a(f"  v_sqrt_f32 v{A}, v{A}")
    a(f"  v_sqrt_f32 v{A+1}, v{A+1}")
    a("  s_nop 0")
    a(f"  v_add_f32 v{T}, v{A}, v{A+1}")
    a("  s_nop 1")
    a(f"  v_add_f32_dpp v{T}, v{T}, v{T} quad_perm:[1,0,3,2] row_mask:0xf bank_mask:0xf")
    a("  s_nop 1")
    a(f"  v_add_f32_dpp v{T}, v{T}, v{T} quad_perm:[2,3,0,1] row_mask:0xf bank_mask:0xf")
    a("  s_nop 1")
    a(f"  v_add_f32_dpp v{T}, v{T}, v{T} row_half_mirror row_mask:0xf bank_mask:0xf")
    a("  s_nop 1")
    a(f"  v_add_f32_dpp v{T}, v{T}, v{T} row_mirror row_mask:0xf bank_mask:0xf")
    a("  s_nop 1")
    a(f"  v_add_f32_dpp v{T}, v{T}, v{T} row_bcast:15 row_mask:0xa bank_mask:0xf")
    a("  s_nop 1")
    a(f"  v_add_f32_dpp v{T}, v{T}, v{T} row_bcast:31 row_mask:0xc bank_mask:0xf")
    a("  s_mov_b64 exec, s[14:15]")
    a(f"  ds_write_b32 v6, v{T}")
    a("  s_mov_b64 exec, -1")
    a("  s_mov_b32 s13, 0x3acccccd")
    a("  v_mov_b32 v2, 0x358637bd")
    a("  s_waitcnt lgkmcnt(0)")
    a("  s_barrier")
    a(f"  ds_read_b128 v[{T+2}:{T+5}], v7")
    a(f"  ds_read_b32 v{T}, v7 offset:16")
    stamp(4)
    if o.prio in (2,3): a("  s_setprio 0")
    a(f"  s_waitcnt vmcnt({tail+(0 if o.gbfirst else 1)})")
    a(f"  v_lshlrev_b32 v{G}, 16, v{G+1}")
    a(f"  v_and_b32 v{G+1}, s12, v{G+1}")
    a(f"  v_pk_mul_f32 v[{A}:{A+1}], v[{A}:{A+1}], v[{G}:{G+1}]")
    a(f"  v_pk_mul_f32 v[{A+2}:{A+3}], v[{A}:{A+1}], 1.0 op_sel_hi:[1,0]") if False else a(f"  v_mov_b64 v[{A+2}:{A+3}], v[{A}:{A+1}]")
    a(f"  s_waitcnt vmcnt({tail})")
    Bq = []
    for j in range(4):
        Bq.append(f"  v_lshlrev_b32 v{B+2*j}, 16, v{B+4+j}")
        Bq.append(f"  v_and_b32 v{B+2*j+1}, s12, v{B+4+j}")
    a(Bq[0]); a(Bq[1])
    a(f"  v_permlane16_swap_b32 v{A+0}, v{A+2}")
    a(f"  v_permlane16_swap_b32 v{A+1}, v{A+3}")
    a(f"  v_mov_b64 v[{A+4}:{A+5}], v[{A}:{A+1}]")
    a(f"  v_mov_b64 v[{A+6}:{A+7}], v[{A+2}:{A+3}]")
    a(Bq[2]); a(Bq[3])
    a(f"  v_permlane32_swap_b32 v{A+0}, v{A+4}")
    a(f"  v_permlane32_swap_b32 v{A+1}, v{A+5}")
    a(f"  v_permlane32_swap_b32 v{A+2}, v{A+6}")
    a(f"  v_permlane32_swap_b32 v{A+3}, v{A+7}")
    a(Bq[4]); a(Bq[5]); a(Bq[6]); a(Bq[7])
    a("  s_waitcnt lgkmcnt(0)")
    a(f"  v_pk_add_f32 v[{T+2}:{T+3}], v[{T+2}:{T+3}], v[{T+4}:{T+5}]")
    a(f"  v_add_f32 v{T}, v{T}, v{T+2}")
    a(f"  v_add_f32 v{T}, v{T}, v{T+3}")
    a(f"  v_fma_f32 v{T}, v{T}, s13, v2")
    a(f"  v_rcp_f32 v{T}, v{T}")
    a("  s_nop 0")
    for j in range(4):
        a(f"  v_pk_fma_f32 v[{A+2*j}:{A+2*j+1}], v[{A+2*j}:{A+2*j+1}], v[{T}:{T+1}], 1.0 op_sel_hi:[1,0,0]")
    for k in range(4):
        R = X + 8*k
        for j in range(4):
            a(f"  v_pk_fma_f32 v[{R+2*j}:{R+2*j+1}], v[{R+2*j}:{R+2*j+1}], v[{A+2*j}:{A+2*j+1}], v[{B+2*j}:{B+2*j+1}]")
        for j in range(4):
            a(f"  v_cvt_pk_bf16_f32 v{R+j}, v{R+2*j}, v{R+2*j+1}")
        off = f" offset:{k*1280}" if k else ""
        a(f"  global_store_dwordx4 v4, v[{R}:{R+3}], s[10:11]{off}{st_flags}")
    if instr:
        stamp(5)
        a("  s_waitcnt vmcnt(0)")
        stamp(6)
        a("  s_getreg_b32 s34, hwreg(HW_REG_XCC_ID)")
        a("  s_getreg_b32 s35, hwreg(HW_REG_HW_ID)")
        a("  s_waitcnt lgkmcnt(0)")
        a("  v_lshrrev_b32 v2, 6, v0")
        a("  s_mul_i32 s3, s2, 5")
        a("  v_add_u32 v2, s3, v2")
        a("  v_lshlrev_b32 v2, 6, v2")
        for i in range(16):
            a(f"  v_mov_b32 v{8+i}, s{20+i}")
        a("  s_mov_b64 exec, 1")
        for i in range(4):
            a(f"  global_store_dwordx4 v2, v[{8+4*i}:{11+4*i}], s[16:17] offset:{16*i}")
    a("L_end:")
    a("  s_endpgm")
    body = "\n".join(L)
    return HEADER.format(grid=1024, block=320, lds=o.lds) + body + FOOTER.format(vgpr=64, sgpr=40 if instr else 16, accum=64)

if __name__ == "__main__":
    p = argparse.ArgumentParser()
    p.add_argument("--ld", default="")
    p.add_argument("--st", default="")
    p.add_argument("--lds", type=int, default=64)
    p.add_argument("--instr", action="store_true")
    p.add_argument("--prio", type=int, default=0)
    p.add_argument("--gbfirst", action="store_true")
    p.add_argument("--touch", type=int, default=0)
    p.add_argument("--touchflags", default="")
    p.add_argument("-o", default="standalone__grn__sampling.s")
    args = p.parse_args()
    open(args.o, "w").write(gen(args))
```

```python
import sys, argparse
from gen_v1 import HEADER, FOOTER

def gen(o):
    L = []
    a = L.append
    instr = o.instr
    def stamp(i):
        if instr:
            a(f"  s_memrealtime s[{20+2*i}:{21+2*i}]")
    ld_flags = (" " + o.ld) if o.ld else ""
    st_flags = (" " + o.st) if o.st else ""
    X = 8
    A = 40
    B = 48
    G = 56
    T = 58
    stamp(0)
    if o.prio: a("  s_setprio 3")
    a("  s_load_dwordx4 s[4:7], s[0:1], 0")
    a("  s_load_dwordx4 s[8:11], s[0:1], 16")
    if instr:
        a("  s_load_dwordx2 s[16:17], s[0:1], 40")
    a("  s_cmp_ge_u32 s2, 1024")
    a("  s_cbranch_scc1 L_end")
    if o.perm == 1:
        a("  s_and_b32 s3, s2, 255")
        a("  s_lshl_b32 s3, s3, 2")
        a("  s_lshr_b32 s12, s2, 8")
        a("  s_add_u32 s3, s3, s12")
        a("  s_mul_i32 s3, s3, 20480")
    elif o.perm == 2:
        a("  s_and_b32 s3, s2, 7")
        a("  s_lshl_b32 s3, s3, 7")
        a("  s_lshr_b32 s12, s2, 3")
        a("  s_add_u32 s3, s3, s12")
        a("  s_mul_i32 s3, s3, 20480")
    elif o.perm == 3:
        a("  s_and_b32 s3, s2, 7")
        a("  s_lshl_b32 s3, s3, 7")
        a("  s_bfe_u32 s12, s2, 0x50003")
        a("  s_lshl_b32 s12, s12, 2")
        a("  s_add_u32 s3, s3, s12")
        a("  s_lshr_b32 s12, s2, 8")
        a("  s_add_u32 s3, s3, s12")
        a("  s_mul_i32 s3, s3, 20480")
    elif o.perm == 4:
        a("  s_and_b32 s3, s2, 511")
        a("  s_lshl_b32 s3, s3, 1")
        a("  s_lshr_b32 s12, s2, 9")
        a("  s_add_u32 s3, s3, s12")
        a("  s_mul_i32 s3, s3, 20480")
    else:
        a("  s_mul_i32 s3, s2, 20480")
    a("  v_and_b32 v1, 15, v0")
    a("  v_lshrrev_b32 v2, 6, v0")
    a("  v_bfe_u32 v3, v0, 4, 2")
    a("  v_lshlrev_b32 v1, 4, v1")
    a("  v_lshl_add_u32 v1, v2, 8, v1")
    a("  v_mul_u32_u24 v4, 5120, v3")
    a("  v_add3_u32 v4, v4, v1, s3")
    a("  v_lshl_add_u32 v5, v3, 2, v1")
    a("  v_lshlrev_b32 v6, 2, v2")
    a("  v_mov_b32 v7, 0")
    a("  s_mov_b32 s12, 0xffff0000")
    a("  s_mov_b32 s14, 0")
    a("  s_mov_b32 s15, 0x80000000")
    a("  s_waitcnt lgkmcnt(0)")
    stamp(1)
    nextra = 0
    def gb_loads():
        a(f"  global_load_dword v{G+1}, v5, s[6:7]")
        a(f"  global_load_dwordx4 v[{B+4}:{B+7}], v1, s[8:9]")
    def touch():
        a("  s_mov_b64 exec, s[14:15]")
        a(f"  global_load_dword v3, v4, s[10:11]{' '+o.touchflags if o.touchflags else ''}")
        a("  s_mov_b64 exec, -1")
    if o.stouch & 4:
        a("  s_load_dword s18, s[10:11], s3")
    if o.touch == 1: touch()
    if o.gbfirst: gb_loads()
    for k in range(4):
        r = X + 8*k + 4
        off = f" offset:{k*1280}" if k else ""
        a(f"  global_load_dwordx4 v[{r}:{r+3}], v4, s[4:5]{off}{ld_flags}")
    after = 0
    if not o.gbfirst:
        gb_loads(); after += 2
    if o.touch == 2:
        touch(); after += 1
    tail = 1 if o.touch == 2 else 0
    if o.stouch & 1:
        a("  s_load_dword s18, s[10:11], s3")
    if o.stouch & 2:
        a("  s_load_dword s19, s[4:5], s3")
    stamp(2)
    if o.prio == 1: a("  s_setprio 0")
    if o.prio == 3: a("  s_setprio 1")
    def unpack(R):
        for j in range(4):
            a(f"  v_lshlrev_b32 v{R+2*j}, 16, v{R+4+j}")
            a(f"  v_and_b32 v{R+2*j+1}, s12, v{R+4+j}")
    for k in range(4):
        R = X + 8*k
        a(f"  s_waitcnt vmcnt({3-k+after})")
        if k == 3: stamp(3)
        unpack(R)
        for j in range(4):
            if k == 0:
                a(f"  v_pk_mul_f32 v[{A+2*j}:{A+2*j+1}], v[{R+2*j}:{R+2*j+1}], v[{R+2*j}:{R+2*j+1}]")
            else:
                a(f"  v_pk_fma_f32 v[{A+2*j}:{A+2*j+1}], v[{R+2*j}:{R+2*j+1}], v[{R+2*j}:{R+2*j+1}], v[{A+2*j}:{A+2*j+1}]")
    a("  s_nop 0")
    a(f"  v_permlane32_swap_b32 v{A+0}, v{A+4}")
    a(f"  v_permlane32_swap_b32 v{A+1}, v{A+5}")
    a(f"  v_permlane32_swap_b32 v{A+2}, v{A+6}")
    a(f"  v_permlane32_swap_b32 v{A+3}, v{A+7}")
    a(f"  v_pk_add_f32 v[{A}:{A+1}], v[{A}:{A+1}], v[{A+4}:{A+5}]")
    a(f"  v_pk_add_f32 v[{A+2}:{A+3}], v[{A+2}:{A+3}], v[{A+6}:{A+7}]")
    a("  s_nop 1")
    a(f"  v_permlane16_swap_b32 v{A+0}, v{A+2}")
    a(f"  v_permlane16_swap_b32 v{A+1}, v{A+3}")
    a(f"  v_pk_add_f32 v[{A}:{A+1}], v[{A}:{A+1}], v[{A+2}:{A+3}]")
    a(f"  v_sqrt_f32 v{A}, v{A}")
    a(f"  v_sqrt_f32 v{A+1}, v{A+1}")
    a("  s_nop 0")
    a(f"  v_add_f32 v{T}, v{A}, v{A+1}")
    a("  s_nop 1")
    a(f"  v_add_f32_dpp v{T}, v{T}, v{T} quad_perm:[1,0,3,2] row_mask:0xf bank_mask:0xf")
    a("  s_nop 1")
    a(f"  v_add_f32_dpp v{T}, v{T}, v{T} quad_perm:[2,3,0,1] row_mask:0xf bank_mask:0xf")
    a("  s_nop 1")
    a(f"  v_add_f32_dpp v{T}, v{T}, v{T} row_half_mirror row_mask:0xf bank_mask:0xf")
    a("  s_nop 1")
    a(f"  v_add_f32_dpp v{T}, v{T}, v{T} row_mirror row_mask:0xf bank_mask:0xf")
    a("  s_nop 1")
    a(f"  v_add_f32_dpp v{T}, v{T}, v{T} row_bcast:15 row_mask:0xa bank_mask:0xf")
    a("  s_nop 1")
    a(f"  v_add_f32_dpp v{T}, v{T}, v{T} row_bcast:31 row_mask:0xc bank_mask:0xf")
    a("  s_mov_b64 exec, s[14:15]")
    a(f"  ds_write_b32 v6, v{T}")
    a("  s_mov_b64 exec, -1")
    a("  s_mov_b32 s13, 0x3acccccd")
    a("  v_mov_b32 v2, 0x358637bd")
    a("  s_waitcnt lgkmcnt(0)")
    a("  s_barrier")
    a(f"  ds_read_b128 v[{T+2}:{T+5}], v7")
    a(f"  ds_read_b32 v{T}, v7 offset:16")
    stamp(4)
    if o.prio in (2,3): a("  s_setprio 0")
    a(f"  s_waitcnt vmcnt({tail+(0 if o.gbfirst else 1)})")
    a(f"  v_lshlrev_b32 v{G}, 16, v{G+1}")
    a(f"  v_and_b32 v{G+1}, s12, v{G+1}")
    a(f"  v_pk_mul_f32 v[{A}:{A+1}], v[{A}:{A+1}], v[{G}:{G+1}]")
    a(f"  v_pk_mul_f32 v[{A+2}:{A+3}], v[{A}:{A+1}], 1.0 op_sel_hi:[1,0]") if False else a(f"  v_mov_b64 v[{A+2}:{A+3}], v[{A}:{A+1}]")
    a(f"  s_waitcnt vmcnt({tail})")
    Bq = []
    for j in range(4):
        Bq.append(f"  v_lshlrev_b32 v{B+2*j}, 16, v{B+4+j}")
        Bq.append(f"  v_and_b32 v{B+2*j+1}, s12, v{B+4+j}")
    a(Bq[0]); a(Bq[1])
    a(f"  v_permlane16_swap_b32 v{A+0}, v{A+2}")
    a(f"  v_permlane16_swap_b32 v{A+1}, v{A+3}")
    a(f"  v_mov_b64 v[{A+4}:{A+5}], v[{A}:{A+1}]")
    a(f"  v_mov_b64 v[{A+6}:{A+7}], v[{A+2}:{A+3}]")
    a(Bq[2]); a(Bq[3])
    a(f"  v_permlane32_swap_b32 v{A+0}, v{A+4}")
    a(f"  v_permlane32_swap_b32 v{A+1}, v{A+5}")
    a(f"  v_permlane32_swap_b32 v{A+2}, v{A+6}")
    a(f"  v_permlane32_swap_b32 v{A+3}, v{A+7}")
    a(Bq[4]); a(Bq[5]); a(Bq[6]); a(Bq[7])
    a("  s_waitcnt lgkmcnt(0)")
    a(f"  v_pk_add_f32 v[{T+2}:{T+3}], v[{T+2}:{T+3}], v[{T+4}:{T+5}]")
    a(f"  v_add_f32 v{T}, v{T}, v{T+2}")
    a(f"  v_add_f32 v{T}, v{T}, v{T+3}")
    a(f"  v_fma_f32 v{T}, v{T}, s13, v2")
    a(f"  v_rcp_f32 v{T}, v{T}")
    a("  s_nop 0")
    for j in range(4):
        a(f"  v_pk_fma_f32 v[{A+2*j}:{A+2*j+1}], v[{A+2*j}:{A+2*j+1}], v[{T}:{T+1}], 1.0 op_sel_hi:[1,0,0]")
    for k in range(4):
        R = X + 8*k
        for j in range(4):
            a(f"  v_pk_fma_f32 v[{R+2*j}:{R+2*j+1}], v[{R+2*j}:{R+2*j+1}], v[{A+2*j}:{A+2*j+1}], v[{B+2*j}:{B+2*j+1}]")
        for j in range(4):
            a(f"  v_cvt_pk_bf16_f32 v{R+j}, v{R+2*j}, v{R+2*j+1}")
        off = f" offset:{k*1280}" if k else ""
        a(f"  global_store_dwordx4 v4, v[{R}:{R+3}], s[10:11]{off}{st_flags}")
    if instr:
        stamp(5)
        a("  s_waitcnt vmcnt(0)")
        stamp(6)
        a("  s_getreg_b32 s34, hwreg(HW_REG_XCC_ID)")
        a("  s_getreg_b32 s35, hwreg(HW_REG_HW_ID)")
        a("  s_waitcnt lgkmcnt(0)")
        a("  v_lshrrev_b32 v2, 6, v0")
        a("  s_mul_i32 s3, s2, 5")
        a("  v_add_u32 v2, s3, v2")
        a("  v_lshlrev_b32 v2, 6, v2")
        for i in range(16):
            a(f"  v_mov_b32 v{8+i}, s{20+i}")
        a("  s_mov_b64 exec, 1")
        for i in range(4):
            a(f"  global_store_dwordx4 v2, v[{8+4*i}:{11+4*i}], s[16:17] offset:{16*i}")
    a("L_end:")
    a("  s_endpgm")
    body = "\n".join(L)
    return HEADER.format(grid=1024, block=320, lds=o.lds) + body + FOOTER.format(vgpr=64, sgpr=40 if instr else 24, accum=64)

if __name__ == "__main__":
    p = argparse.ArgumentParser()
    p.add_argument("--ld", default="")
    p.add_argument("--st", default="")
    p.add_argument("--lds", type=int, default=64)
    p.add_argument("--instr", action="store_true")
    p.add_argument("--prio", type=int, default=0)
    p.add_argument("--stouch", type=int, default=0)
    p.add_argument("--perm", type=int, default=0)
    p.add_argument("--gbfirst", action="store_true")
    p.add_argument("--touch", type=int, default=0)
    p.add_argument("--touchflags", default="")
    p.add_argument("-o", default="standalone__grn__sampling.s")
    args = p.parse_args()
    open(args.o, "w").write(gen(args))
```

```python
import sys, argparse
from gen_v1 import HEADER, FOOTER

def gen(o):
    L = []
    a = L.append
    instr = o.instr
    def stamp(i):
        if instr:
            a(f"  s_memrealtime s[{20+2*i}:{21+2*i}]")
    ld_flags = (" " + o.ld) if o.ld else ""
    st_flags = (" " + o.st) if o.st else ""
    X = 8
    A = 40
    B = 48
    G = 56
    T = 58
    stamp(0)
    if o.prio: a("  s_setprio 3")
    a("  s_load_dwordx4 s[4:7], s[0:1], 0")
    a("  s_load_dwordx4 s[8:11], s[0:1], 16")
    if instr:
        a("  s_load_dwordx2 s[16:17], s[0:1], 40")
    a("  s_cmp_ge_u32 s2, 1024")
    a("  s_cbranch_scc1 L_end")
    if o.perm == 1:
        a("  s_and_b32 s3, s2, 255")
        a("  s_lshl_b32 s3, s3, 2")
        a("  s_lshr_b32 s12, s2, 8")
        a("  s_add_u32 s3, s3, s12")
        a("  s_mul_i32 s3, s3, 20480")
    elif o.perm == 2:
        a("  s_and_b32 s3, s2, 7")
        a("  s_lshl_b32 s3, s3, 7")
        a("  s_lshr_b32 s12, s2, 3")
        a("  s_add_u32 s3, s3, s12")
        a("  s_mul_i32 s3, s3, 20480")
    elif o.perm == 3:
        a("  s_and_b32 s3, s2, 7")
        a("  s_lshl_b32 s3, s3, 7")
        a("  s_bfe_u32 s12, s2, 0x50003")
        a("  s_lshl_b32 s12, s12, 2")
        a("  s_add_u32 s3, s3, s12")
        a("  s_lshr_b32 s12, s2, 8")
        a("  s_add_u32 s3, s3, s12")
        a("  s_mul_i32 s3, s3, 20480")
    elif o.perm == 4:
        a("  s_and_b32 s3, s2, 511")
        a("  s_lshl_b32 s3, s3, 1")
        a("  s_lshr_b32 s12, s2, 9")
        a("  s_add_u32 s3, s3, s12")
        a("  s_mul_i32 s3, s3, 20480")
    else:
        a("  s_mul_i32 s3, s2, 20480")
    a("  v_and_b32 v1, 15, v0")
    a("  v_lshrrev_b32 v2, 6, v0")
    a("  v_bfe_u32 v3, v0, 4, 2")
    a("  v_lshlrev_b32 v1, 4, v1")
    a("  v_lshl_add_u32 v1, v2, 8, v1")
    a("  v_mul_u32_u24 v4, 5120, v3")
    a("  v_add3_u32 v4, v4, v1, s3")
    a("  v_lshl_add_u32 v5, v3, 2, v1")
    a("  v_lshlrev_b32 v6, 2, v2")
    a("  v_mov_b32 v7, 0")
    a("  s_mov_b32 s12, 0xffff0000")
    a("  s_mov_b32 s14, 0")
    a("  s_mov_b32 s15, 0x80000000")
    a("  s_waitcnt lgkmcnt(0)")
    stamp(1)
    nextra = 0
    def gb_loads():
        a(f"  global_load_dword v{G+1}, v5, s[6:7]")
        a(f"  global_load_dwordx4 v[{B+4}:{B+7}], v1, s[8:9]")
    def touch():
        a("  s_mov_b64 exec, s[14:15]")
        a(f"  global_load_dword v3, v4, s[10:11]{' '+o.touchflags if o.touchflags else ''}")
        a("  s_mov_b64 exec, -1")
    if o.stouch & 8:
        a("  s_load_dword s16, s[6:7], 0" if not instr else "  s_load_dword s36, s[6:7], 0")
        a("  s_load_dword s17, s[8:9], 0" if not instr else "  s_load_dword s37, s[8:9], 0")
    if o.stouch & 96:
        a(f"  s_cmp_lt_u32 s2, {o.tgen}")
        a("  s_cbranch_scc1 L_notouch")
        a(f"  s_sub_u32 s13, s2, {o.tgen}")
        a("  s_lshr_b32 s13, s13, 3")
        a(f"  s_mul_i32 s13, s13, {20971520 // ((1024-o.tgen)//8)}")
        if o.stouch & 32: a("  s_load_dword s18, s[10:11], s13")
        if o.stouch & 64: a("  s_load_dword s19, s[4:5], s13")
        a("L_notouch:")
    if o.stouch & 4:
        a("  s_load_dword s18, s[10:11], s3")
    if o.stouch & 16:
        a("  s_load_dword s19, s[16:17], 0")
    if o.touch == 1: touch()
    if o.gbfirst: gb_loads()
    for k in range(4):
        r = X + 8*k + 4
        off = f" offset:{k*1280}" if k else ""
        a(f"  global_load_dwordx4 v[{r}:{r+3}], v4, s[4:5]{off}{ld_flags}")
    after = 0
    if not o.gbfirst:
        gb_loads(); after += 2
    if o.touch == 2:
        touch(); after += 1
    tail = 1 if o.touch == 2 else 0
    if o.stouch & 1:
        a("  s_load_dword s18, s[10:11], s3")
    if o.stouch & 2:
        a("  s_load_dword s19, s[4:5], s3")
    stamp(2)
    if o.prio == 1: a("  s_setprio 0")
    if o.prio == 3: a("  s_setprio 1")
    def unpack(R):
        for j in range(4):
            a(f"  v_lshlrev_b32 v{R+2*j}, 16, v{R+4+j}")
            a(f"  v_and_b32 v{R+2*j+1}, s12, v{R+4+j}")
    for k in range(4):
        R = X + 8*k
        a(f"  s_waitcnt vmcnt({3-k+after})")
        if k == 3: stamp(3)
        unpack(R)
        for j in range(4):
            if k == 0:
                a(f"  v_pk_mul_f32 v[{A+2*j}:{A+2*j+1}], v[{R+2*j}:{R+2*j+1}], v[{R+2*j}:{R+2*j+1}]")
            else:
                a(f"  v_pk_fma_f32 v[{A+2*j}:{A+2*j+1}], v[{R+2*j}:{R+2*j+1}], v[{R+2*j}:{R+2*j+1}], v[{A+2*j}:{A+2*j+1}]")
    a("  s_nop 0")
    a(f"  v_permlane32_swap_b32 v{A+0}, v{A+4}")
    a(f"  v_permlane32_swap_b32 v{A+1}, v{A+5}")
    a(f"  v_permlane32_swap_b32 v{A+2}, v{A+6}")
    a(f"  v_permlane32_swap_b32 v{A+3}, v{A+7}")
    a(f"  v_pk_add_f32 v[{A}:{A+1}], v[{A}:{A+1}], v[{A+4}:{A+5}]")
    a(f"  v_pk_add_f32 v[{A+2}:{A+3}], v[{A+2}:{A+3}], v[{A+6}:{A+7}]")
    a("  s_nop 1")
    a(f"  v_permlane16_swap_b32 v{A+0}, v{A+2}")
    a(f"  v_permlane16_swap_b32 v{A+1}, v{A+3}")
    a(f"  v_pk_add_f32 v[{A}:{A+1}], v[{A}:{A+1}], v[{A+2}:{A+3}]")
    a(f"  v_sqrt_f32 v{A}, v{A}")
    a(f"  v_sqrt_f32 v{A+1}, v{A+1}")
    a("  s_nop 0")
    a(f"  v_add_f32 v{T}, v{A}, v{A+1}")
    a("  s_nop 1")
    a(f"  v_add_f32_dpp v{T}, v{T}, v{T} quad_perm:[1,0,3,2] row_mask:0xf bank_mask:0xf")
    a("  s_nop 1")
    a(f"  v_add_f32_dpp v{T}, v{T}, v{T} quad_perm:[2,3,0,1] row_mask:0xf bank_mask:0xf")
    a("  s_nop 1")
    a(f"  v_add_f32_dpp v{T}, v{T}, v{T} row_half_mirror row_mask:0xf bank_mask:0xf")
    a("  s_nop 1")
    a(f"  v_add_f32_dpp v{T}, v{T}, v{T} row_mirror row_mask:0xf bank_mask:0xf")
    a("  s_nop 1")
    a(f"  v_add_f32_dpp v{T}, v{T}, v{T} row_bcast:15 row_mask:0xa bank_mask:0xf")
    a("  s_nop 1")
    a(f"  v_add_f32_dpp v{T}, v{T}, v{T} row_bcast:31 row_mask:0xc bank_mask:0xf")
    a("  s_mov_b64 exec, s[14:15]")
    a(f"  ds_write_b32 v6, v{T}")
    a("  s_mov_b64 exec, -1")
    a("  s_mov_b32 s13, 0x3acccccd")
    a("  v_mov_b32 v2, 0x358637bd")
    a("  s_waitcnt lgkmcnt(0)")
    a("  s_barrier")
    a(f"  ds_read_b128 v[{T+2}:{T+5}], v7")
    a(f"  ds_read_b32 v{T}, v7 offset:16")
    stamp(4)
    if o.prio in (2,3): a("  s_setprio 0")
    a(f"  s_waitcnt vmcnt({tail+(0 if o.gbfirst else 1)})")
    a(f"  v_lshlrev_b32 v{G}, 16, v{G+1}")
    a(f"  v_and_b32 v{G+1}, s12, v{G+1}")
    a(f"  v_pk_mul_f32 v[{A}:{A+1}], v[{A}:{A+1}], v[{G}:{G+1}]")
    a(f"  v_pk_mul_f32 v[{A+2}:{A+3}], v[{A}:{A+1}], 1.0 op_sel_hi:[1,0]") if False else a(f"  v_mov_b64 v[{A+2}:{A+3}], v[{A}:{A+1}]")
    a(f"  s_waitcnt vmcnt({tail})")
    Bq = []
    for j in range(4):
        Bq.append(f"  v_lshlrev_b32 v{B+2*j}, 16, v{B+4+j}")
        Bq.append(f"  v_and_b32 v{B+2*j+1}, s12, v{B+4+j}")
    a(Bq[0]); a(Bq[1])
    a(f"  v_permlane16_swap_b32 v{A+0}, v{A+2}")
    a(f"  v_permlane16_swap_b32 v{A+1}, v{A+3}")
    a(f"  v_mov_b64 v[{A+4}:{A+5}], v[{A}:{A+1}]")
    a(f"  v_mov_b64 v[{A+6}:{A+7}], v[{A+2}:{A+3}]")
    a(Bq[2]); a(Bq[3])
    a(f"  v_permlane32_swap_b32 v{A+0}, v{A+4}")
    a(f"  v_permlane32_swap_b32 v{A+1}, v{A+5}")
    a(f"  v_permlane32_swap_b32 v{A+2}, v{A+6}")
    a(f"  v_permlane32_swap_b32 v{A+3}, v{A+7}")
    a(Bq[4]); a(Bq[5]); a(Bq[6]); a(Bq[7])
    a("  s_waitcnt lgkmcnt(0)")
    a(f"  v_pk_add_f32 v[{T+2}:{T+3}], v[{T+2}:{T+3}], v[{T+4}:{T+5}]")
    a(f"  v_add_f32 v{T}, v{T}, v{T+2}")
    a(f"  v_add_f32 v{T}, v{T}, v{T+3}")
    a(f"  v_fma_f32 v{T}, v{T}, s13, v2")
    a(f"  v_rcp_f32 v{T}, v{T}")
    a("  s_nop 0")
    for j in range(4):
        a(f"  v_pk_fma_f32 v[{A+2*j}:{A+2*j+1}], v[{A+2*j}:{A+2*j+1}], v[{T}:{T+1}], 1.0 op_sel_hi:[1,0,0]")
    for k in range(4):
        R = X + 8*k
        for j in range(4):
            a(f"  v_pk_fma_f32 v[{R+2*j}:{R+2*j+1}], v[{R+2*j}:{R+2*j+1}], v[{A+2*j}:{A+2*j+1}], v[{B+2*j}:{B+2*j+1}]")
        for j in range(4):
            a(f"  v_cvt_pk_bf16_f32 v{R+j}, v{R+2*j}, v{R+2*j+1}")
        off = f" offset:{k*1280}" if k else ""
        a(f"  global_store_dwordx4 v4, v[{R}:{R+3}], s[10:11]{off}{st_flags}")
    if instr:
        stamp(5)
        a("  s_waitcnt vmcnt(0)")
        stamp(6)
        a("  s_getreg_b32 s34, hwreg(HW_REG_XCC_ID)")
        a("  s_getreg_b32 s35, hwreg(HW_REG_HW_ID)")
        a("  s_waitcnt lgkmcnt(0)")
        a("  v_lshrrev_b32 v2, 6, v0")
        a("  s_mul_i32 s3, s2, 5")
        a("  v_add_u32 v2, s3, v2")
        a("  v_lshlrev_b32 v2, 6, v2")
        for i in range(16):
            a(f"  v_mov_b32 v{8+i}, s{20+i}")
        a("  s_mov_b64 exec, 1")
        for i in range(4):
            a(f"  global_store_dwordx4 v2, v[{8+4*i}:{11+4*i}], s[16:17] offset:{16*i}")
    a("L_end:")
    a("  s_endpgm")
    body = "\n".join(L)
    return HEADER.format(grid=1024, block=320, lds=o.lds) + body + FOOTER.format(vgpr=64, sgpr=40 if instr else 24, accum=64)

if __name__ == "__main__":
    p = argparse.ArgumentParser()
    p.add_argument("--ld", default="")
    p.add_argument("--st", default="")
    p.add_argument("--lds", type=int, default=64)
    p.add_argument("--instr", action="store_true")
    p.add_argument("--prio", type=int, default=0)
    p.add_argument("--stouch", type=int, default=0)
    p.add_argument("--perm", type=int, default=0)
    p.add_argument("--tgen", type=int, default=768)
    p.add_argument("--gbfirst", action="store_true")
    p.add_argument("--touch", type=int, default=0)
    p.add_argument("--touchflags", default="")
    p.add_argument("-o", default="standalone__grn__sampling.s")
    args = p.parse_args()
    open(args.o, "w").write(gen(args))
```

```python
import sys, argparse
from gen_v1 import HEADER, FOOTER

def gen(o):
    L = []
    a = L.append
    instr = o.instr
    G_, P = o.G, o.P
    NB = G_*P
    nwg = 1024 // NB
    def stamp(i):
        if instr:
            a(f"  s_memrealtime s[{20+2*i}:{21+2*i}]")
    ld_flags = (" " + o.ld) if o.ld else ""
    st_flags = (" " + o.st) if o.st else ""
    X0 = 16
    A = X0 + 32*P
    B = A + 8
    Gr = B + 8
    T = Gr + 2
    nv = T + 6
    nv = (nv + 7)//8*8
    stamp(0)
    a("  s_setprio 3")
    a("  s_load_dwordx4 s[4:7], s[0:1], 0")
    a("  s_load_dwordx4 s[8:11], s[0:1], 16")
    if instr:
        a("  s_load_dwordx2 s[16:17], s[0:1], 40")
    a(f"  s_cmp_ge_u32 s2, {nwg}")
    a("  s_cbranch_scc1 L_end")
    a("  v_lshrrev_b32 v2, 6, v0")
    a("  v_mul_u32_u24 v8, 52, v2")
    a("  v_lshrrev_b32 v8, 8, v8")
    a("  v_mul_u32_u24 v9, 5, v8")
    a("  v_sub_u32 v2, v2, v9")
    a("  s_mul_i32 s3, s2, 20480")
    gstride = 20480*nwg; pstride = 20480*nwg*G_
    a("  v_and_b32 v1, 15, v0")
    a("  v_bfe_u32 v3, v0, 4, 2")
    a("  v_lshlrev_b32 v1, 4, v1")
    a("  v_lshl_add_u32 v1, v2, 8, v1")
    a("  v_mul_u32_u24 v4, 5120, v3")
    a("  v_add3_u32 v4, v4, v1, s3")
    a(f"  v_mul_u32_u24 v9, {gstride}, v8")
    a("  v_add_u32 v4, v4, v9")
    for p in range(1, P):
        a(f"  v_add_u32 v{9+p}, {pstride*p}, v4")
    voff = lambda p: "v4" if p == 0 else f"v{9+p}"
    a("  v_lshl_add_u32 v5, v3, 2, v1")
    a("  v_lshlrev_b32 v7, 5, v8")
    a("  v_lshl_add_u32 v6, v2, 2, v7")
    a("  s_mov_b32 s12, 0xffff0000")
    a("  s_mov_b32 s14, 0")
    a("  s_mov_b32 s15, 0x80000000")
    a("  s_mov_b32 s13, 0x3acccccd")
    a("  v_mov_b32 v2, 0x358637bd")
    a("  s_waitcnt lgkmcnt(0)")
    stamp(1)
    if o.stouch:
        a("  s_load_dword s18, s[6:7], 0")
        a("  s_load_dword s19, s[8:9], 0")
    def loads(p):
        for k in range(4):
            r = X0 + 32*p + 8*k + 4
            off = f" offset:{k*1280}" if k else ""
            a(f"  global_load_dwordx4 v[{r}:{r+3}], {voff(p)}, s[4:5]{off}{ld_flags}")
    loads(0)
    a(f"  global_load_dword v{Gr+1}, v5, s[6:7]")
    a(f"  global_load_dwordx4 v[{B+4}:{B+7}], v1, s[8:9]")
    for p in range(1, P):
        a(f"  s_setprio {max(3-p,0) if o.lprio else 3}")
        loads(p)
    stamp(2)
    a("  s_setprio 0")
    def unpack(R):
        for j in range(4):
            a(f"  v_lshlrev_b32 v{R+2*j}, 16, v{R+4+j}")
            a(f"  v_and_b32 v{R+2*j+1}, s12, v{R+4+j}")
    for p in range(P):
        for k in range(4):
            R = X0 + 32*p + 8*k
            younger = (3-k) + 4*(P-1-p) + (2 if p == 0 else 0) + 4*p
            a(f"  s_waitcnt vmcnt({younger})")
            if p == P-1 and k == 3: stamp(3)
            unpack(R)
            for j in range(4):
                if k == 0:
                    a(f"  v_pk_mul_f32 v[{A+2*j}:{A+2*j+1}], v[{R+2*j}:{R+2*j+1}], v[{R+2*j}:{R+2*j+1}]")
                else:
                    a(f"  v_pk_fma_f32 v[{A+2*j}:{A+2*j+1}], v[{R+2*j}:{R+2*j+1}], v[{R+2*j}:{R+2*j+1}], v[{A+2*j}:{A+2*j+1}]")
        a("  s_nop 0")
        a(f"  v_permlane32_swap_b32 v{A+0}, v{A+4}")
        a(f"  v_permlane32_swap_b32 v{A+1}, v{A+5}")
        a(f"  v_permlane32_swap_b32 v{A+2}, v{A+6}")
        a(f"  v_permlane32_swap_b32 v{A+3}, v{A+7}")
        a(f"  v_pk_add_f32 v[{A}:{A+1}], v[{A}:{A+1}], v[{A+4}:{A+5}]")
        a(f"  v_pk_add_f32 v[{A+2}:{A+3}], v[{A+2}:{A+3}], v[{A+6}:{A+7}]")
        a("  s_nop 1")
        a(f"  v_permlane16_swap_b32 v{A+0}, v{A+2}")
        a(f"  v_permlane16_swap_b32 v{A+1}, v{A+3}")
        a(f"  v_pk_add_f32 v[{A}:{A+1}], v[{A}:{A+1}], v[{A+2}:{A+3}]")
        a(f"  v_sqrt_f32 v{A}, v{A}")
        a(f"  v_sqrt_f32 v{A+1}, v{A+1}")
        a("  s_nop 0")
        a(f"  v_add_f32 v{T}, v{A}, v{A+1}")
        for dpp in ["quad_perm:[1,0,3,2] row_mask:0xf", "quad_perm:[2,3,0,1] row_mask:0xf", "row_half_mirror row_mask:0xf", "row_mirror row_mask:0xf", "row_bcast:15 row_mask:0xa", "row_bcast:31 row_mask:0xc"]:
            a("  s_nop 1")
            a(f"  v_add_f32_dpp v{T}, v{T}, v{T} {dpp} bank_mask:0xf")
        lo = 32*G_*p
        a("  s_mov_b64 exec, s[14:15]")
        a(f"  ds_write_b32 v6, v{T}" + (f" offset:{lo}" if lo else ""))
        a("  s_mov_b64 exec, -1")
        if p == 0:
            a(f"  s_waitcnt vmcnt({4*(P-1)})")
            a(f"  v_lshlrev_b32 v{Gr}, 16, v{Gr+1}")
            a(f"  v_and_b32 v{Gr+1}, s12, v{Gr+1}")
            unpack(B)
        a(f"  v_pk_mul_f32 v[{A}:{A+1}], v[{A}:{A+1}], v[{Gr}:{Gr+1}]")
        a(f"  v_mov_b64 v[{A+2}:{A+3}], v[{A}:{A+1}]")
        a("  s_nop 1")
        a(f"  v_permlane16_swap_b32 v{A+0}, v{A+2}")
        a(f"  v_permlane16_swap_b32 v{A+1}, v{A+3}")
        a(f"  v_mov_b64 v[{A+4}:{A+5}], v[{A}:{A+1}]")
        a(f"  v_mov_b64 v[{A+6}:{A+7}], v[{A+2}:{A+3}]")
        a("  s_nop 0")
        a(f"  v_permlane32_swap_b32 v{A+0}, v{A+4}")
        a(f"  v_permlane32_swap_b32 v{A+1}, v{A+5}")
        a(f"  v_permlane32_swap_b32 v{A+2}, v{A+6}")
        a(f"  v_permlane32_swap_b32 v{A+3}, v{A+7}")
        a("  s_waitcnt lgkmcnt(0)")
        a("  s_barrier")
        if p == 0: stamp(4)
        a(f"  ds_read_b128 v[{T+2}:{T+5}], v7" + (f" offset:{lo}" if lo else ""))
        a(f"  ds_read_b32 v{T}, v7 offset:{lo+16}")
        a("  s_waitcnt lgkmcnt(0)")
        a(f"  v_pk_add_f32 v[{T+2}:{T+3}], v[{T+2}:{T+3}], v[{T+4}:{T+5}]")
        a(f"  v_add_f32 v{T}, v{T}, v{T+2}")
        a(f"  v_add_f32 v{T}, v{T}, v{T+3}")
        a(f"  v_fma_f32 v{T}, v{T}, s13, v2")
        a(f"  v_rcp_f32 v{T}, v{T}")
        a("  s_nop 0")
        for j in range(4):
            a(f"  v_pk_fma_f32 v[{A+2*j}:{A+2*j+1}], v[{A+2*j}:{A+2*j+1}], v[{T}:{T+1}], 1.0 op_sel_hi:[1,0,0]")
        for k in range(4):
            R = X0 + 32*p + 8*k
            for j in range(4):
                a(f"  v_pk_fma_f32 v[{R+2*j}:{R+2*j+1}], v[{R+2*j}:{R+2*j+1}], v[{A+2*j}:{A+2*j+1}], v[{B+2*j}:{B+2*j+1}]")
            for j in range(4):
                a(f"  v_cvt_pk_bf16_f32 v{R+j}, v{R+2*j}, v{R+2*j+1}")
            off = f" offset:{k*1280}" if k else ""
            a(f"  global_store_dwordx4 {voff(p)}, v[{R}:{R+3}], s[10:11]{off}{st_flags}")
    if instr:
        stamp(5)
        a("  s_waitcnt vmcnt(0)")
        stamp(6)
        a("  s_getreg_b32 s34, hwreg(HW_REG_XCC_ID)")
        a("  s_getreg_b32 s35, hwreg(HW_REG_HW_ID)")
        a("  s_waitcnt lgkmcnt(0)")
        a("  v_lshrrev_b32 v2, 6, v0")
        a(f"  s_mul_i32 s3, s2, {5*G_}")
        a("  v_add_u32 v2, s3, v2")
        a("  v_lshlrev_b32 v2, 6, v2")
        for i in range(16):
            a(f"  v_mov_b32 v{16+i}, s{20+i}")
        a("  s_mov_b64 exec, 1")
        for i in range(4):
            a(f"  global_store_dwordx4 v2, v[{16+4*i}:{19+4*i}], s[16:17] offset:{16*i}")
    a("L_end:")
    a("  s_endpgm")
    body = "\n".join(L)
    return HEADER.format(grid=nwg, block=320*G_, lds=o.lds) + body + FOOTER.format(vgpr=nv, sgpr=40 if instr else 24, accum=nv)

if __name__ == "__main__":
    p = argparse.ArgumentParser()
    p.add_argument("--ld", default="nt")
    p.add_argument("--st", default="nt")
    p.add_argument("--lds", type=int, default=90000)
    p.add_argument("--instr", action="store_true")
    p.add_argument("--stouch", type=int, default=1)
    p.add_argument("--lprio", type=int, default=1)
    p.add_argument("-G", type=int, default=2)
    p.add_argument("-P", type=int, default=2)
    p.add_argument("-o", default="standalone__grn__sampling.s")
    args = p.parse_args()
    open(args.o, "w").write(gen(args))
```

```python
import sys, argparse
from gen_v1 import HEADER, FOOTER

def gen(o):
    L = []
    a = L.append
    instr = o.instr
    def stamp(i):
        if instr:
            a(f"  s_memrealtime s[{20+2*i}:{21+2*i}]")
    ld_flags = (" " + o.ld) if o.ld else ""
    st_flags = (" " + o.st) if o.st else ""
    X = 8
    A = 40
    B = 48
    G = 56
    T = 58
    stamp(0)
    if o.prio: a("  s_setprio 3")
    a("  s_load_dwordx4 s[4:7], s[0:1], 0")
    a("  s_load_dwordx4 s[8:11], s[0:1], 16")
    if instr:
        a("  s_load_dwordx2 s[16:17], s[0:1], 40")
    a("  s_cmp_ge_u32 s2, 1024")
    a("  s_cbranch_scc1 L_end")
    if o.perm == 1:
        a("  s_and_b32 s3, s2, 255")
        a("  s_lshl_b32 s3, s3, 2")
        a("  s_lshr_b32 s12, s2, 8")
        a("  s_add_u32 s3, s3, s12")
        a("  s_mul_i32 s3, s3, 20480")
    elif o.perm == 2:
        a("  s_and_b32 s3, s2, 7")
        a("  s_lshl_b32 s3, s3, 7")
        a("  s_lshr_b32 s12, s2, 3")
        a("  s_add_u32 s3, s3, s12")
        a("  s_mul_i32 s3, s3, 20480")
    elif o.perm == 3:
        a("  s_and_b32 s3, s2, 7")
        a("  s_lshl_b32 s3, s3, 7")
        a("  s_bfe_u32 s12, s2, 0x50003")
        a("  s_lshl_b32 s12, s12, 2")
        a("  s_add_u32 s3, s3, s12")
        a("  s_lshr_b32 s12, s2, 8")
        a("  s_add_u32 s3, s3, s12")
        a("  s_mul_i32 s3, s3, 20480")
    elif o.perm == 4:
        a("  s_and_b32 s3, s2, 511")
        a("  s_lshl_b32 s3, s3, 1")
        a("  s_lshr_b32 s12, s2, 9")
        a("  s_add_u32 s3, s3, s12")
        a("  s_mul_i32 s3, s3, 20480")
    else:
        a("  s_mul_i32 s3, s2, 20480")
    a("  v_and_b32 v1, 15, v0")
    a("  v_lshrrev_b32 v2, 6, v0")
    a("  v_bfe_u32 v3, v0, 4, 2")
    a("  v_lshlrev_b32 v1, 4, v1")
    a("  v_lshl_add_u32 v1, v2, 8, v1")
    a("  v_mul_u32_u24 v4, 5120, v3")
    a("  v_add3_u32 v4, v4, v1, s3")
    a("  v_lshl_add_u32 v5, v3, 2, v1")
    a("  v_lshlrev_b32 v6, 2, v2")
    a("  v_mov_b32 v7, 0")
    a("  s_mov_b32 s12, 0xffff0000")
    a("  s_mov_b32 s14, 0")
    a("  s_mov_b32 s15, 0x80000000")
    a("  s_waitcnt lgkmcnt(0)")
    stamp(1)
    nextra = 0
    def gb_loads():
        a(f"  global_load_dword v{G+1}, v5, s[6:7]")
        a(f"  global_load_dwordx4 v[{B+4}:{B+7}], v1, s[8:9]")
    def touch():
        a("  s_mov_b64 exec, s[14:15]")
        a(f"  global_load_dword v3, v4, s[10:11]{' '+o.touchflags if o.touchflags else ''}")
        a("  s_mov_b64 exec, -1")
    if o.stouch & 8:
        a("  s_load_dword s16, s[6:7], 0" if not instr else "  s_load_dword s36, s[6:7], 0")
        a("  s_load_dword s17, s[8:9], 0" if not instr else "  s_load_dword s37, s[8:9], 0")
    if o.stouch & 4:
        a("  s_load_dword s18, s[10:11], s3")
    if o.stouch & 16:
        a("  s_load_dword s19, s[16:17], 0")
    if o.touch == 1: touch()
    if o.gbfirst: gb_loads()
    for k in range(4):
        r = X + 8*k + 4
        off = f" offset:{k*1280}" if k else ""
        a(f"  global_load_dwordx4 v[{r}:{r+3}], v4, s[4:5]{off}{ld_flags}")
    after = 0
    if not o.gbfirst:
        gb_loads(); after += 2
    if o.touch == 2:
        touch(); after += 1
    tail = 1 if o.touch == 2 else 0
    if o.stouch & 1:
        a("  s_load_dword s18, s[10:11], s3")
    if o.stouch & 2:
        a("  s_load_dword s19, s[4:5], s3")
    stamp(2)
    if o.prio == 1: a("  s_setprio 0")
    if o.prio == 3: a("  s_setprio 1")
    def unpack(R):
        for j in range(4):
            a(f"  v_lshlrev_b32 v{R+2*j}, 16, v{R+4+j}")
            a(f"  v_and_b32 v{R+2*j+1}, s12, v{R+4+j}")
    for k in range(4):
        R = X + 8*k
        a(f"  s_waitcnt vmcnt({3-k+after})")
        if k == 3: stamp(3)
        unpack(R)
        for j in range(4):
            if k == 0:
                a(f"  v_pk_mul_f32 v[{A+2*j}:{A+2*j+1}], v[{R+2*j}:{R+2*j+1}], v[{R+2*j}:{R+2*j+1}]")
            else:
                a(f"  v_pk_fma_f32 v[{A+2*j}:{A+2*j+1}], v[{R+2*j}:{R+2*j+1}], v[{R+2*j}:{R+2*j+1}], v[{A+2*j}:{A+2*j+1}]")
    a("  s_nop 0")
    a(f"  v_permlane32_swap_b32 v{A+0}, v{A+4}")
    a(f"  v_permlane32_swap_b32 v{A+1}, v{A+5}")
    a(f"  v_permlane32_swap_b32 v{A+2}, v{A+6}")
    a(f"  v_permlane32_swap_b32 v{A+3}, v{A+7}")
    a(f"  v_pk_add_f32 v[{A}:{A+1}], v[{A}:{A+1}], v[{A+4}:{A+5}]")
    a(f"  v_pk_add_f32 v[{A+2}:{A+3}], v[{A+2}:{A+3}], v[{A+6}:{A+7}]")
    a("  s_nop 1")
    a(f"  v_permlane16_swap_b32 v{A+0}, v{A+2}")
    a(f"  v_permlane16_swap_b32 v{A+1}, v{A+3}")
    a(f"  v_pk_add_f32 v[{A}:{A+1}], v[{A}:{A+1}], v[{A+2}:{A+3}]")
    a(f"  v_sqrt_f32 v{A}, v{A}")
    a(f"  v_sqrt_f32 v{A+1}, v{A+1}")
    a("  s_nop 0")
    a(f"  v_add_f32 v{T}, v{A}, v{A+1}")
    a("  s_nop 1")
    a(f"  v_add_f32_dpp v{T}, v{T}, v{T} quad_perm:[1,0,3,2] row_mask:0xf bank_mask:0xf")
    a("  s_nop 1")
    a(f"  v_add_f32_dpp v{T}, v{T}, v{T} quad_perm:[2,3,0,1] row_mask:0xf bank_mask:0xf")
    a("  s_nop 1")
    a(f"  v_add_f32_dpp v{T}, v{T}, v{T} row_half_mirror row_mask:0xf bank_mask:0xf")
    a("  s_nop 1")
    a(f"  v_add_f32_dpp v{T}, v{T}, v{T} row_mirror row_mask:0xf bank_mask:0xf")
    a("  s_nop 1")
    a(f"  v_add_f32_dpp v{T}, v{T}, v{T} row_bcast:15 row_mask:0xa bank_mask:0xf")
    a("  s_nop 1")
    a(f"  v_add_f32_dpp v{T}, v{T}, v{T} row_bcast:31 row_mask:0xc bank_mask:0xf")
    a("  s_mov_b64 exec, s[14:15]")
    a(f"  ds_write_b32 v6, v{T}")
    a("  s_mov_b64 exec, -1")
    a("  s_mov_b32 s13, 0x3acccccd")
    a("  v_mov_b32 v2, 0x358637bd")
    a("  s_waitcnt lgkmcnt(0)")
    a("  s_barrier")
    a(f"  ds_read_b128 v[{T+2}:{T+5}], v7")
    a(f"  ds_read_b32 v{T}, v7 offset:16")
    stamp(4)
    if o.prio in (2,3): a("  s_setprio 0")
    a(f"  s_waitcnt vmcnt({tail+(0 if o.gbfirst else 1)})")
    a(f"  v_lshlrev_b32 v{G}, 16, v{G+1}")
    a(f"  v_and_b32 v{G+1}, s12, v{G+1}")
    a(f"  v_pk_mul_f32 v[{A}:{A+1}], v[{A}:{A+1}], v[{G}:{G+1}]")
    a(f"  v_pk_mul_f32 v[{A+2}:{A+3}], v[{A}:{A+1}], 1.0 op_sel_hi:[1,0]") if False else a(f"  v_mov_b64 v[{A+2}:{A+3}], v[{A}:{A+1}]")
    a(f"  s_waitcnt vmcnt({tail})")
    Bq = []
    for j in range(4):
        Bq.append(f"  v_lshlrev_b32 v{B+2*j}, 16, v{B+4+j}")
        Bq.append(f"  v_and_b32 v{B+2*j+1}, s12, v{B+4+j}")
    a(Bq[0]); a(Bq[1])
    a(f"  v_permlane16_swap_b32 v{A+0}, v{A+2}")
    a(f"  v_permlane16_swap_b32 v{A+1}, v{A+3}")
    a(f"  v_mov_b64 v[{A+4}:{A+5}], v[{A}:{A+1}]")
    a(f"  v_mov_b64 v[{A+6}:{A+7}], v[{A+2}:{A+3}]")
    a(Bq[2]); a(Bq[3])
    a(f"  v_permlane32_swap_b32 v{A+0}, v{A+4}")
    a(f"  v_permlane32_swap_b32 v{A+1}, v{A+5}")
    a(f"  v_permlane32_swap_b32 v{A+2}, v{A+6}")
    a(f"  v_permlane32_swap_b32 v{A+3}, v{A+7}")
    a(Bq[4]); a(Bq[5]); a(Bq[6]); a(Bq[7])
    a("  s_waitcnt lgkmcnt(0)")
    a(f"  v_pk_add_f32 v[{T+2}:{T+3}], v[{T+2}:{T+3}], v[{T+4}:{T+5}]")
    a(f"  v_add_f32 v{T}, v{T}, v{T+2}")
    a(f"  v_add_f32 v{T}, v{T}, v{T+3}")
    a(f"  v_fma_f32 v{T}, v{T}, s13, v2")
    a(f"  v_rcp_f32 v{T}, v{T}")
    a("  s_nop 0")
    for j in range(4):
        a(f"  v_pk_fma_f32 v[{A+2*j}:{A+2*j+1}], v[{A+2*j}:{A+2*j+1}], v[{T}:{T+1}], 1.0 op_sel_hi:[1,0,0]")
    for k in range(4):
        R = X + 8*k
        for j in range(4):
            a(f"  v_pk_fma_f32 v[{R+2*j}:{R+2*j+1}], v[{R+2*j}:{R+2*j+1}], v[{A+2*j}:{A+2*j+1}], v[{B+2*j}:{B+2*j+1}]")
        for j in range(4):
            a(f"  v_cvt_pk_bf16_f32 v{R+j}, v{R+2*j}, v{R+2*j+1}")
        off = f" offset:{k*1280}" if k else ""
        a(f"  global_store_dwordx4 v4, v[{R}:{R+3}], s[10:11]{off}{st_flags}")
    if instr:
        stamp(5)
        a("  s_waitcnt vmcnt(0)")
        stamp(6)
        a("  s_getreg_b32 s34, hwreg(HW_REG_XCC_ID)")
        a("  s_getreg_b32 s35, hwreg(HW_REG_HW_ID)")
        a("  s_waitcnt lgkmcnt(0)")
        a("  v_lshrrev_b32 v2, 6, v0")
        a("  s_mul_i32 s3, s2, 5")
        a("  v_add_u32 v2, s3, v2")
        a("  v_lshlrev_b32 v2, 6, v2")
        for i in range(16):
            a(f"  v_mov_b32 v{8+i}, s{20+i}")
        a("  s_mov_b64 exec, 1")
        for i in range(4):
            a(f"  global_store_dwordx4 v2, v[{8+4*i}:{11+4*i}], s[16:17] offset:{16*i}")
    a("L_end:")
    a("  s_endpgm")
    body = "\n".join(L)
    return HEADER.format(grid=1024, block=320, lds=o.lds) + body + FOOTER.format(vgpr=64, sgpr=40 if instr else 24, accum=64)

if __name__ == "__main__":
    p = argparse.ArgumentParser()
    p.add_argument("--ld", default="")
    p.add_argument("--st", default="")
    p.add_argument("--lds", type=int, default=64)
    p.add_argument("--instr", action="store_true")
    p.add_argument("--prio", type=int, default=0)
    p.add_argument("--stouch", type=int, default=0)
    p.add_argument("--perm", type=int, default=0)
    p.add_argument("--gbfirst", action="store_true")
    p.add_argument("--touch", type=int, default=0)
    p.add_argument("--touchflags", default="")
    p.add_argument("-o", default="standalone__grn__sampling.s")
    args = p.parse_args()
    open(args.o, "w").write(gen(args))
```

```python
L = []
a = L.append
X, A, B, G, T = 8, 40, 48, 56, 58
a("""; Kernarg layout for this problem (48 bytes, ptrs only, base s[0:1]):
; @launch grid=(1024,1,1) block=(320,1,1) lds=64
;
;   wave w owns channels [128w, 128w+128); lane = (rg = lane/16, c16 = lane%16) owns the 16-byte chunk
.amdgcn_target "amdgcn-amd-amdhsa--gfx950"
.text
.globl standalone__grn__sampling_kernel
.p2align 8
.type standalone__grn__sampling_kernel,@function
standalone__grn__sampling_kernel:""")
def i(s, c=None):
    a(f"  {s:<72}; {c}" if c else f"  {s}")
i("s_setprio 3", "loads go first")
i("s_load_dwordx4 s[4:7], s[0:1], 0", "x, g")
i("s_load_dwordx4 s[8:11], s[0:1], 16", "b, out")
i("s_cmp_ge_u32 s2, 1024", "extra workgroups leave")
i("s_cbranch_scc1 L_end")
i("s_mul_i32 s3, s2, 20480", "batch byte offset")
i("v_and_b32 v1, 15, v0", "c16")
i("v_lshrrev_b32 v2, 6, v0", "wave w")
i("v_bfe_u32 v3, v0, 4, 2", "rg")
i("v_lshlrev_b32 v1, 4, v1")
i("v_lshl_add_u32 v1, v2, 8, v1", "column byte offset = 256w + 16c16 (also the b offset)")
i("v_mul_u32_u24 v4, 5120, v3", "4 rows * 1280 B per row group")
i("v_add3_u32 v4, v4, v1, s3", "x / out byte offset of row 4rg")
i("v_lshl_add_u32 v5, v3, 2, v1", "g offset: channel pair 2rg, 2rg+1 of the chunk")
i("v_lshlrev_b32 v6, 2, v2", "LDS write address 4w")
i("v_mov_b32 v7, 0", "LDS read address")
i("s_mov_b32 s12, 0xffff0000")
i("s_mov_b32 s14, 0")
i("s_mov_b32 s15, 0x80000000", "s[14:15] = lane 63")
i("s_waitcnt lgkmcnt(0)")
i("s_load_dword s16, s[6:7], 0", "start the address translation of g and b beside that of x")
i("s_load_dword s17, s[8:9], 0")
for k in range(4):
    r = X + 8*k + 4
    off = f" offset:{k*1280}" if k else ""
    i(f"global_load_dwordx4 v[{r}:{r+3}], v4, s[4:5]{off} nt", f"row 4rg+{k}")
i(f"global_load_dword v{G+1}, v5, s[6:7]", "g pair")
i(f"global_load_dwordx4 v[{B+4}:{B+7}], v1, s[8:9]", "b chunk")
i("s_setprio 0")
def unpack(R):
    out = []
    for j in range(4):
        out.append(f"v_lshlrev_b32 v{R+2*j}, 16, v{R+4+j}")
        out.append(f"v_and_b32 v{R+2*j+1}, s12, v{R+4+j}")
    return out
for k in range(4):
    R = X + 8*k
    i(f"s_waitcnt vmcnt({5-k})")
    for s in unpack(R): i(s)
    for j in range(4):
        p = f"v[{R+2*j}:{R+2*j+1}]"; q = f"v[{A+2*j}:{A+2*j+1}]"
        i(f"v_pk_mul_f32 {q}, {p}, {p}" if k == 0 else f"v_pk_fma_f32 {q}, {p}, {p}, {q}")
i("s_nop 0")
for j in range(4): i(f"v_permlane32_swap_b32 v{A+j}, v{A+4+j}")
i(f"v_pk_add_f32 v[{A}:{A+1}], v[{A}:{A+1}], v[{A+4}:{A+5}]")
i(f"v_pk_add_f32 v[{A+2}:{A+3}], v[{A+2}:{A+3}], v[{A+6}:{A+7}]")
i("s_nop 1")
i(f"v_permlane16_swap_b32 v{A+0}, v{A+2}")
i(f"v_permlane16_swap_b32 v{A+1}, v{A+3}")
i(f"v_pk_add_f32 v[{A}:{A+1}], v[{A}:{A+1}], v[{A+2}:{A+3}]")
i(f"v_sqrt_f32 v{A}, v{A}", "gx")
i(f"v_sqrt_f32 v{A+1}, v{A+1}")
i("s_nop 0")
i(f"v_add_f32 v{T}, v{A}, v{A+1}")
for dpp in ["quad_perm:[1,0,3,2] row_mask:0xf", "quad_perm:[2,3,0,1] row_mask:0xf", "row_half_mirror row_mask:0xf",
            "row_mirror row_mask:0xf", "row_bcast:15 row_mask:0xa", "row_bcast:31 row_mask:0xc"]:
    i("s_nop 1")
    i(f"v_add_f32_dpp v{T}, v{T}, v{T} {dpp} bank_mask:0xf")
i("s_mov_b64 exec, s[14:15]")
i(f"ds_write_b32 v6, v{T}")
i("s_mov_b64 exec, -1")
i("s_mov_b32 s13, 0x3acccccd", "1/640")
i("v_mov_b32 v2, 0x358637bd", "1e-6")
i("s_waitcnt lgkmcnt(0)")
i("s_barrier")
i(f"ds_read_b128 v[{T+2}:{T+5}], v7")
i(f"ds_read_b32 v{T}, v7 offset:16")
i("s_waitcnt vmcnt(1)")
i(f"v_lshlrev_b32 v{G}, 16, v{G+1}")
i(f"v_and_b32 v{G+1}, s12, v{G+1}")
i(f"v_pk_mul_f32 v[{A}:{A+1}], v[{A}:{A+1}], v[{G}:{G+1}]")
i(f"v_mov_b64 v[{A+2}:{A+3}], v[{A}:{A+1}]")
i("s_waitcnt vmcnt(0)")
Bq = unpack(B)
i(Bq[0]); i(Bq[1])
i(f"v_permlane16_swap_b32 v{A+0}, v{A+2}")
i(f"v_permlane16_swap_b32 v{A+1}, v{A+3}")
i(f"v_mov_b64 v[{A+4}:{A+5}], v[{A}:{A+1}]")
i(f"v_mov_b64 v[{A+6}:{A+7}], v[{A+2}:{A+3}]")
i(Bq[2]); i(Bq[3])
for j in range(4): i(f"v_permlane32_swap_b32 v{A+j}, v{A+4+j}")
for s in Bq[4:]: i(s)
i("s_waitcnt lgkmcnt(0)")
i(f"v_pk_add_f32 v[{T+2}:{T+3}], v[{T+2}:{T+3}], v[{T+4}:{T+5}]")
i(f"v_add_f32 v{T}, v{T}, v{T+2}")
i(f"v_add_f32 v{T}, v{T}, v{T+3}")
i(f"v_fma_f32 v{T}, v{T}, s13, v2", "mean + 1e-6")
i(f"v_rcp_f32 v{T}, v{T}")
i("s_nop 0")
for j in range(4):
    q = f"v[{A+2*j}:{A+2*j+1}]"
    i(f"v_pk_fma_f32 {q}, {q}, v[{T}:{T+1}], 1.0 op_sel_hi:[1,0,0]", "s = 1 + g*nx" if j == 0 else None)
for k in range(4):
    R = X + 8*k
    for j in range(4):
        p = f"v[{R+2*j}:{R+2*j+1}]"
        i(f"v_pk_fma_f32 {p}, {p}, v[{A+2*j}:{A+2*j+1}], v[{B+2*j}:{B+2*j+1}]")
    for j in range(4):
        i(f"v_cvt_pk_bf16_f32 v{R+j}, v{R+2*j}, v{R+2*j+1}")
    off = f" offset:{k*1280}" if k else ""
    i(f"global_store_dwordx4 v4, v[{R}:{R+3}], s[10:11]{off} nt")
a("L_end:")
i("s_endpgm")
a(""".section .rodata,"a"
.p2align 6
.amdhsa_kernel standalone__grn__sampling_kernel
  .amdhsa_next_free_vgpr 64
  .amdhsa_next_free_sgpr 24
  .amdhsa_accum_offset 64
  .amdhsa_group_segment_fixed_size 0
  .amdhsa_kernarg_size 48
  .amdhsa_user_sgpr_count 2
  .amdhsa_user_sgpr_kernarg_segment_ptr 1
  .amdhsa_system_sgpr_workgroup_id_x 1
  .amdhsa_float_denorm_mode_32 3
.end_amdhsa_kernel""")
open("standalone__grn__sampling.s", "w").write("\n".join(L) + "\n")
```
